```python
import torch

def _softmax(x, axis=-1):
    return torch.softmax(x, dim=axis)
def _gelu(x):
    return torch.nn.functional.gelu(x, approximate="tanh")
def _silu(x):
    return torch.nn.functional.silu(x)
def _sigmoid(x):
    return torch.sigmoid(x)
def _layernorm(x, axis=-1, eps=1e-5):
    m = x.mean(dim=axis, keepdim=True)
    v = x.var(dim=axis, keepdim=True, unbiased=False)
    return (x - m) / torch.sqrt(v + eps)
def _scatter_add(tgt, idx, src, axis=0):
    return tgt.clone().index_add_(axis, idx, src)
def _segment_sum(src, seg, n):
    out = torch.zeros((n,) + src.shape[1:], dtype=src.dtype)
    return out.index_add_(0, seg, src)
def _pad(x, pw):
    flat = tuple(v for pair in reversed(pw) for v in pair)
    return torch.nn.functional.pad(x, flat)

kernel_name = 'standalone__gqa_softmax__near_ridge'

def setup_inputs():

    _w = (lambda a: (lambda t: t.to(torch.bfloat16) if t.is_floating_point() else t)(torch.as_tensor(a)))
    B, Hq, Hkv, Sq, Sk, D = 64, 32, 16, 256, 256, 128
    return {
        "q": _w((lambda *s: torch.randn(*s, dtype=torch.bfloat16) * 0.8)(B, Hq, Sq, D)),
        "k": _w((lambda *s: torch.randn(*s, dtype=torch.bfloat16) * 0.8)(B, Hkv, Sk, D)),
        "v": _w((lambda *s: torch.randn(*s, dtype=torch.bfloat16) * 0.05)(B, Hkv, Sk, D)),
    }

def reference(q, k, v):
    B, Hq, Sq, D = q.shape
    Hkv = k.shape[1]
    rep = Hq // Hkv
    k = (lambda x, n, axis: torch.repeat_interleave(x, n, dim=axis))(k, rep, axis=1)
    v = (lambda x, n, axis: torch.repeat_interleave(x, n, dim=axis))(v, rep, axis=1)
    scale = D ** -0.5
    scores = torch.einsum("bhqd,bhkd->bhqk", q, k) * scale
    p = _softmax(scores, axis=-1)
    return torch.einsum("bhqk,bhkd->bhqd", p, v)
```

```python
import sys, math

NAME = "standalone__gqa_softmax__near_ridge"

HDR = """; Kernarg layout for this problem (48 bytes, ptrs only, base s[0:1]):
; @launch grid=(256,1,1) block=(512,1,1) lds=163840
"""


class Opt:
    ld_flags = ""
    q_flags = ""
    st_flags = ""
    prio = 1
    nocompute = 0
    pairmap = 0
    stamps = 0


o = Opt()
for a in sys.argv[2:]:
    k, v = a.split("=")
    cur = getattr(o, k)
    setattr(o, k, type(cur)(v.replace("+", " ")) if isinstance(cur, str) else int(v))

L = []


def e(s):
    L.append("    " + s)


def lab(s):
    L.append(s + ":")


def vr(a, n):
    return f"v[{a}:{a+n-1}]"


S0 = 0
O0 = 64
Q0 = 128
R0 = 160
F0 = 192
VK = 224
VV = 232
VSR = 236
VSW = 240
VG = 241
VKD = 242
VVD = 243
VM = 244
VT = 245
VL = 246
VRL = 250
VM2 = 251
NVGPR = 252

sQ, sK, sV, sO = 12, 16, 20, 24
sW, sG, sIT, sC = 28, 29, 30, 31
sKL, sVL = 32, 33
sKoff, sVoff = 34, 35
sQoff, sOoff = 36, 37
sT0, sT1, sT2 = 38, 39, 40
sPSTEP = 41

KBASE, VBASE, STG = 0, 65536, 131072


def srd(r):
    return f"s[{r}:{r+3}]"


def dma(sr, vaddr, sl, soff):
    for n in range(8):
        e(f"s_add_u32 m0, s{sl}, {n*8192}")
        e(f"s_add_u32 s{sT0}, s{soff}, {n*8192}")
        e(f"buffer_load_dwordx4 v{vaddr}, {srd(sr)}, s{sT0} offen {o.ld_flags} lds")


def ldq():
    e(f"s_add_u32 s{sT0}, s{sQoff}, 4096")
    for hh in range(2):
        for ii in range(4):
            so = sQoff if ii < 2 else sT0
            e(f"buffer_load_dwordx4 {vr(R0+16*hh+4*ii,4)}, v{VG}, {srd(sQ)}, s{so} offen offset:{(ii&1)*256+hh*128} {o.q_flags}")


def qprep():
    for hh in range(2):
        for ii in range(4):
            e(f"ds_write_b128 v{VSW}, {vr(R0+16*hh+4*ii,4)} offset:{(ii&1)*128+(ii>>1)*2048}")
        for s in range(4):
            e(f"ds_read_b128 {vr(Q0+16*hh+4*s,4)}, v{VSR+s}")
    e("s_waitcnt lgkmcnt(0)")


def qk():
    NB, PF = 8, 6

    def rd(i):
        T, s = i >> 3, i & 7
        e(f"ds_read_b128 {vr(F0+4*(i%NB),4)}, v{VK+s} offset:{T*8192}")
    for i in range(PF):
        rd(i)
    for i in range(64):
        T, s = i >> 3, i & 7
        if i + PF < 64:
            rd(i + PF)
        e(f"s_waitcnt lgkmcnt({min(PF, 63-i)})")
        c = "0" if s == 0 else vr(S0+16*T, 16)
        e(f"v_mfma_f32_32x32x16_bf16 {vr(S0+16*T,16)}, {vr(F0+4*(i%NB),4)}, {vr(Q0+4*s,4)}, {c}")
        if T >= 1 and s >= 4:
            b = S0 + 16*(T-1) + 4*(s-4)
            if T == 1 and s == 4:
                e(f"v_max3_f32 v{VM}, v{b}, v{b+1}, v{b+2}")
                e(f"v_max_f32 v{VM2}, v{b+3}, v{b+3}")
            else:
                e(f"v_max3_f32 v{VM}, v{VM}, v{b}, v{b+1}")
                e(f"v_max3_f32 v{VM2}, v{VM2}, v{b+2}, v{b+3}")


def sm():
    e("s_nop 11")
    b = S0 + 16*7
    for j in range(4):
        e(f"v_max3_f32 v{VM}, v{VM}, v{b+4*j}, v{b+4*j+1}")
        e(f"v_max3_f32 v{VM2}, v{VM2}, v{b+4*j+2}, v{b+4*j+3}")
    e(f"v_max_f32 v{VM}, v{VM}, v{VM2}")
    e(f"v_mov_b32 v{VT}, v{VM}")
    e("s_nop 1")
    e(f"v_permlane32_swap_b32 v{VM}, v{VT}")
    e(f"v_max_f32 v{VM}, v{VM}, v{VT}")
    e(f"v_mul_f32 v{VM}, s{sC}, v{VM}")
    BL = 8
    nb = 128 // BL

    def fma(bk):
        for i in range(BL):
            r = S0 + bk*BL + i
            e(f"v_fma_f32 v{r}, v{r}, s{sC}, -v{VM}")

    def ex(bk):
        for i in range(BL):
            r = S0 + bk*BL + i
            e(f"v_exp_f32 v{r}, v{r}")

    def fin(bk):
        for i in range(BL):
            r = S0 + bk*BL + i
            if bk == 0 and i < 4:
                e(f"v_add_f32 v{VL+i}, v{r}, v{r+4}")
            elif bk == 0:
                pass
            else:
                e(f"v_add_f32 v{VL+(i&3)}, v{VL+(i&3)}, v{r}")
        for i in range(0, BL, 2):
            r = S0 + bk*BL + i
            e(f"v_cvt_pk_bf16_f32 v{S0+(bk*BL+i)//2}, v{r}, v{r+1}")
    fma(0)
    for bk in range(nb):
        ex(bk)
        if bk + 1 < nb:
            fma(bk + 1)
        else:
            e("s_nop 0")
        fin(bk)
    e(f"v_add_f32 v{VL}, v{VL}, v{VL+1}")
    e(f"v_add_f32 v{VL+2}, v{VL+2}, v{VL+3}")
    e(f"v_add_f32 v{VL}, v{VL}, v{VL+2}")
    e(f"v_mov_b32 v{VT}, v{VL}")
    e("s_nop 1")
    e(f"v_permlane32_swap_b32 v{VL}, v{VT}")
    e(f"v_add_f32 v{VL}, v{VL}, v{VT}")
    e(f"v_rcp_f32 v{VRL}, v{VL}")


def pv():
    NB, PF = 8, 6

    def rd(i):
        u, t = i >> 2, i & 3
        b = F0 + 4*(i % NB)
        e(f"ds_read_b64_tr_b16 {vr(b,2)}, v{VV+t} offset:{u*4096}")
        e(f"ds_read_b64_tr_b16 {vr(b+2,2)}, v{VV+t} offset:{u*4096+2048}")
    for i in range(PF):
        rd(i)
    for i in range(64):
        u, t = i >> 2, i & 3
        if i + PF < 64:
            rd(i + PF)
        e(f"s_waitcnt lgkmcnt({2*min(PF, 63-i)})")
        c = "0" if u == 0 else vr(O0+16*t, 16)
        e(f"v_mfma_f32_32x32x16_bf16 {vr(O0+16*t,16)}, {vr(F0+4*(i%NB),4)}, {vr(S0+4*u,4)}, {c}")


def ep():
    e("s_nop 11")
    e(f"s_add_u32 s{sT0}, s{sOoff}, 4096")
    for hh in range(2):
        for tt in range(2):
            t = 2*hh + tt
            for i in range(16):
                e(f"v_mul_f32 v{O0+16*t+i}, v{O0+16*t+i}, v{VRL}")
            for i in range(8):
                e(f"v_cvt_pk_bf16_f32 v{S0+8*t+i}, v{O0+16*t+2*i}, v{O0+16*t+2*i+1}")
            for jj in range(2):
                e(f"ds_write_b128 v{VSR+2*tt+jj}, {vr(S0+8*t+4*jj,4)}")
        for ii in range(4):
            e(f"ds_read_b128 {vr(F0+16*hh+4*ii,4)}, v{VSW} offset:{(ii&1)*128+(ii>>1)*2048}")
    for hh in range(2):
        for ii in range(4):
            rem = (3 - ii) + (8 if hh == 0 else 0)
            e(f"s_waitcnt lgkmcnt({rem})")
            so = sOoff if ii < 2 else sT0
            e(f"buffer_store_dwordx4 {vr(F0+16*hh+4*ii,4)}, v{VG}, {srd(sO)}, s{so} offen offset:{(ii&1)*256+hh*128} {o.st_flags}")


def prio(p):
    if o.prio:
        e(f"s_setprio {p}")


def gen():
    e("s_cmp_ge_u32 s2, 256")
    e("s_cbranch_scc1 L_end")
    e("s_load_dwordx8 s[4:11], s[0:1], 0")
    e("v_lshrrev_b32 v1, 6, v0")
    e("v_and_b32 v0, 63, v0")
    e(f"v_readfirstlane_b32 s{sW}, v1")
    e(f"s_mov_b32 s{sC}, {hex(int.from_bytes(__import__('struct').pack('<f', 128**-0.5*math.log2(math.e)), 'little'))}")
    e(f"s_mov_b32 s{sIT}, 0")
    e("v_and_b32 v2, 31, v0")
    e("v_lshrrev_b32 v3, 5, v0")
    e("v_and_b32 v4, 15, v0")
    e("v_lshrrev_b32 v5, 4, v0")
    e("v_lshrrev_b32 v6, 3, v0")
    e("v_and_b32 v7, 7, v0")
    e(f"s_lshr_b32 s{sG}, s{sW}, 2")
    e(f"s_and_b32 s{sT1}, s{sW}, 3")
    e(f"s_lshl_b32 s{sT0}, s{sT1}, 2")
    e(f"v_add_u32 v8, s{sT0}, v5")
    e("v_xor_b32 v9, v4, v8")
    e(f"s_lshl_b32 s{sT2}, s{sG}, 4")
    e(f"v_add_u32 v8, s{sT2}, v8")
    e("v_lshlrev_b32 v8, 8, v8")
    e(f"v_lshl_add_u32 v{VKD}, v9, 4, v8")
    e("v_lshlrev_b32 v9, 2, v5")
    e("v_xor_b32 v9, v4, v9")
    e(f"v_lshl_add_u32 v{VVD}, v9, 4, v8")
    e(f"s_lshl_b32 s{sKL}, s{sW}, 10")
    e(f"s_add_u32 s{sVL}, s{sKL}, {VBASE}")
    e("v_lshlrev_b32 v8, 9, v6")
    e(f"v_lshl_add_u32 v{VG}, v7, 4, v8")
    if o.pairmap == 0:
        e(f"s_lshl_b32 s{sKoff}, s2, 16")
        e(f"s_mov_b32 s{sPSTEP}, {256*65536}")
    else:
        e(f"s_lshl_b32 s{sKoff}, s2, 18")
        e(f"s_mov_b32 s{sPSTEP}, 65536")
    e(f"s_mov_b32 s{sVoff}, s{sKoff}")
    e(f"s_lshl_b32 s{sQoff}, s{sKoff}, 1")
    e(f"s_lshl_b32 s{sT0}, s{sW}, 13")
    e(f"s_add_u32 s{sQoff}, s{sQoff}, s{sT0}")
    e(f"s_mov_b32 s{sOoff}, s{sQoff}")
    e("s_waitcnt lgkmcnt(0)")
    for r, p, sz in ((sQ, 4, 128 << 20), (sK, 6, 64 << 20), (sV, 8, 64 << 20), (sO, 10, 128 << 20)):
        e(f"s_mov_b32 s{r}, s{p}")
        e(f"s_and_b32 s{r+1}, s{p+1}, 0xffff")
        e(f"s_mov_b32 s{r+2}, {hex(sz)}")
        e(f"s_mov_b32 s{r+3}, 0x20000")
    dma(sK, VKD, sKL, sKoff)
    ldq()
    dma(sV, VVD, sVL, sVoff)
    e(f"s_add_u32 s{sKoff}, s{sKoff}, s{sPSTEP}")
    e(f"s_add_u32 s{sVoff}, s{sVoff}, s{sPSTEP}")
    e(f"s_add_u32 s{sQoff}, s{sQoff}, 65536")
    e("v_xor_b32 v8, v3, v4")
    e("v_lshlrev_b32 v8, 4, v8")
    e(f"v_lshl_add_u32 v{VK}, v2, 8, v8")
    for s in range(1, 8):
        e(f"v_xor_b32 v{VK+s}, {32*s}, v{VK}")
    e("v_bfe_u32 v8, v0, 2, 2")
    e("v_lshl_add_u32 v9, v3, 2, v8")
    e("v_lshlrev_b32 v9, 8, v9")
    e("v_lshl_add_u32 v9, v8, 6, v9")
    e("v_bfe_u32 v10, v0, 4, 1")
    e("v_lshl_add_u32 v9, v10, 5, v9")
    e("v_and_b32 v10, 1, v0")
    e("v_lshl_add_u32 v9, v10, 4, v9")
    e("v_bfe_u32 v10, v0, 1, 1")
    e("v_lshl_add_u32 v9, v10, 3, v9")
    e(f"v_add_u32 v{VV}, {VBASE}, v9")
    for t in range(1, 4):
        e(f"v_xor_b32 v{VV+t}, {64*t}, v{VV}")
    e(f"s_lshl_b32 s{sT0}, s{sW}, 12")
    e(f"s_add_u32 s{sT0}, s{sT0}, {STG}")
    e("v_xor_b32 v8, v7, v6")
    e("v_lshlrev_b32 v8, 4, v8")
    e("v_lshl_add_u32 v8, v6, 8, v8")
    e(f"v_add_u32 v{VSW}, s{sT0}, v8")
    e("v_bfe_u32 v8, v0, 1, 3")
    e("v_xor_b32 v8, v8, v3")
    e("v_lshlrev_b32 v8, 4, v8")
    e("v_lshl_add_u32 v8, v2, 7, v8")
    e(f"v_add_u32 v{VSR}, s{sT0}, v8")
    for s in range(1, 4):
        e(f"v_xor_b32 v{VSR+s}, {32*s}, v{VSR}")
    e("s_waitcnt vmcnt(8)")
    qprep()
    ldq()
    e(f"s_sub_u32 s{sQoff}, s{sQoff}, 65536")
    e(f"s_add_u32 s{sQoff}, s{sQoff}, s{sPSTEP}")
    e(f"s_add_u32 s{sQoff}, s{sQoff}, s{sPSTEP}")
    e("s_barrier")
    e("s_branch L_qk")

    lab("L_loop")
    e(f"s_and_b32 s{sT1}, s{sIT}, 1")
    e(f"s_or_b32 s{sT1}, s{sT1}, s{sG}")
    e("s_cbranch_scc1 L_qk")
    e("s_waitcnt vmcnt(16)")
    e("s_barrier")
    dma(sV, VVD, sVL, sVoff)
    e(f"s_add_u32 s{sVoff}, s{sVoff}, s{sPSTEP}")
    lab("L_qk")
    prio(1)
    if not o.nocompute:
        qk()
    prio(0)

    def sync_mid(tag, grp, steady):
        e(f"s_cmp_eq_u32 s{sG}, {grp}")
        e(f"s_cbranch_scc0 L_{tag}_done")
        e(f"s_bitcmp1_b32 s{sIT}, 0")
        e(f"s_cbranch_scc1 L_{tag}_odd")
        e(f"s_cmp_eq_u32 s{sIT}, 0")
        e(f"s_cbranch_scc1 L_{tag}_first")
        e(f"s_waitcnt vmcnt({steady})")
        e("s_barrier")
        e(f"s_branch L_{tag}_done")
        lab(f"L_{tag}_first")
        e("s_waitcnt vmcnt(8)")
        e("s_barrier")
        e(f"s_branch L_{tag}_done")
        lab(f"L_{tag}_odd")
        e("s_barrier")
        e(f"s_cmp_eq_u32 s{sIT}, 7")
        e(f"s_cbranch_scc1 L_{tag}_done")
        dma(sK, VKD, sKL, sKoff)
        e(f"s_add_u32 s{sKoff}, s{sKoff}, s{sPSTEP}")
        lab(f"L_{tag}_done")

    sync_mid("p1", 1, 16)
    if not o.nocompute:
        sm()
    sync_mid("p2", 0, 0)
    prio(1)
    if not o.nocompute:
        pv()
    prio(0)
    e(f"s_and_b32 s{sT1}, s{sIT}, s{sG}")
    e("s_cbranch_scc0 L_p3_done")
    e(f"s_cmp_eq_u32 s{sIT}, 7")
    e("s_cbranch_scc1 L_p3_done")
    e("s_waitcnt vmcnt(0)")
    e("s_barrier")
    dma(sV, VVD, sVL, sVoff)
    e(f"s_add_u32 s{sVoff}, s{sVoff}, s{sPSTEP}")
    lab("L_p3_done")
    ep()
    e(f"s_cmp_eq_u32 s{sIT}, 7")
    e("s_cbranch_scc1 L_end")
    e(f"s_bitcmp1_b32 s{sIT}, 0")
    e("s_cbranch_scc1 L_e_odd")
    e(f"s_add_u32 s{sOoff}, s{sOoff}, 65536")
    e(f"s_mov_b32 s{sT2}, 65536")
    e("s_waitcnt vmcnt(8)")
    e("s_branch L_e_join")
    lab("L_e_odd")
    e(f"s_lshl_b32 s{sT2}, s{sPSTEP}, 1")
    e(f"s_sub_u32 s{sT2}, s{sT2}, 65536")
    e(f"s_add_u32 s{sOoff}, s{sOoff}, s{sT2}")
    e("s_waitcnt vmcnt(16)")
    lab("L_e_join")
    qprep()
    e(f"s_add_u32 s{sIT}, s{sIT}, 1")
    e(f"s_cmp_eq_u32 s{sIT}, 7")
    e("s_cbranch_scc1 L_qk")
    ldq()
    e(f"s_add_u32 s{sQoff}, s{sQoff}, s{sT2}")
    e("s_branch L_loop")
    lab("L_end")
    e("s_endpgm")


gen()
out = HDR + f""".amdgcn_target "amdgcn-amd-amdhsa--gfx950"
.text
.globl {NAME}_kernel
.p2align 8
.type {NAME}_kernel,@function
{NAME}_kernel:
""" + "\n".join(L) + f"""
.section .rodata,"a"
.p2align 6
.amdhsa_kernel {NAME}_kernel
  .amdhsa_next_free_vgpr {NVGPR}
  .amdhsa_next_free_sgpr 48
  .amdhsa_accum_offset {(NVGPR+3)//4*4}
  .amdhsa_group_segment_fixed_size 0
  .amdhsa_kernarg_size 48
  .amdhsa_user_sgpr_count 2
  .amdhsa_user_sgpr_kernarg_segment_ptr 1
  .amdhsa_system_sgpr_workgroup_id_x 1
.end_amdhsa_kernel
"""
open(sys.argv[1], "w").write(out)
```

```python
import sys, math

NAME = "standalone__gqa_softmax__near_ridge"

HDR = """; Kernarg layout for this problem (48 bytes, ptrs only, base s[0:1]):
; @launch grid=(256,1,1) block=(512,1,1) lds=163840
"""


class Opt:
    ld_flags = ""
    q_flags = ""
    st_flags = ""
    prio = 1
    nocompute = 0
    pairmap = 0
    stamps = 0
    spin = 0
    spin0 = 0


o = Opt()
for a in sys.argv[2:]:
    k, v = a.split("=")
    cur = getattr(o, k)
    setattr(o, k, type(cur)(v.replace("+", " ")) if isinstance(cur, str) else int(v))

L = []


def e(s):
    L.append("    " + s)


def lab(s):
    L.append(s + ":")


def vr(a, n):
    return f"v[{a}:{a+n-1}]"


S0 = 0
O0 = 64
Q0 = 128
R0 = 160
F0 = 192
VK = 224
VV = 232
VSR = 236
VSW = 240
VG = 241
VKD = 242
VVD = 243
VM = 244
VT = 245
VL = 246
VRL = 250
VM2 = 251
NVGPR = 256

sQ, sK, sV, sO = 12, 16, 20, 24
sW, sG, sIT, sC = 28, 29, 30, 31
sKL, sVL = 32, 33
sKoff, sVoff = 34, 35
sQoff, sOoff = 36, 37
sT0, sT1, sT2 = 38, 39, 40
sPSTEP = 41

KBASE, VBASE, STG = 0, 65536, 131072


def srd(r):
    return f"s[{r}:{r+3}]"


def dma(sr, vaddr, sl, soff):
    for n in range(8):
        e(f"s_add_u32 m0, s{sl}, {n*8192}")
        e(f"s_add_u32 s{sT0}, s{soff}, {n*8192}")
        e(f"buffer_load_dwordx4 v{vaddr}, {srd(sr)}, s{sT0} offen {o.ld_flags} lds")


def ldq():
    e(f"s_add_u32 s{sT0}, s{sQoff}, 4096")
    for hh in range(2):
        for ii in range(4):
            so = sQoff if ii < 2 else sT0
            e(f"buffer_load_dwordx4 {vr(R0+16*hh+4*ii,4)}, v{VG}, {srd(sQ)}, s{so} offen offset:{(ii&1)*256+hh*128} {o.q_flags}")


def qprep():
    for hh in range(2):
        for ii in range(4):
            e(f"ds_write_b128 v{VSW}, {vr(R0+16*hh+4*ii,4)} offset:{(ii&1)*128+(ii>>1)*2048}")
        for s in range(4):
            e(f"ds_read_b128 {vr(Q0+16*hh+4*s,4)}, v{VSR+s}")
    e("s_waitcnt lgkmcnt(0)")


def qk():
    NB, PF = 8, 6

    def rd(i):
        T, s = i >> 3, i & 7
        e(f"ds_read_b128 {vr(F0+4*(i%NB),4)}, v{VK+s} offset:{T*8192}")
    for i in range(PF):
        rd(i)
    for i in range(64):
        T, s = i >> 3, i & 7
        if i + PF < 64:
            rd(i + PF)
        e(f"s_waitcnt lgkmcnt({min(PF, 63-i)})")
        c = "0" if s == 0 else vr(S0+16*T, 16)
        e(f"v_mfma_f32_32x32x16_bf16 {vr(S0+16*T,16)}, {vr(F0+4*(i%NB),4)}, {vr(Q0+4*s,4)}, {c}")
        if T >= 1 and s >= 4:
            b = S0 + 16*(T-1) + 4*(s-4)
            if T == 1 and s == 4:
                e(f"v_max3_f32 v{VM}, v{b}, v{b+1}, v{b+2}")
                e(f"v_max_f32 v{VM2}, v{b+3}, v{b+3}")
            else:
                e(f"v_max3_f32 v{VM}, v{VM}, v{b}, v{b+1}")
                e(f"v_max3_f32 v{VM2}, v{VM2}, v{b+2}, v{b+3}")


def sm():
    e("s_nop 11")
    b = S0 + 16*7
    for j in range(4):
        e(f"v_max3_f32 v{VM}, v{VM}, v{b+4*j}, v{b+4*j+1}")
        e(f"v_max3_f32 v{VM2}, v{VM2}, v{b+4*j+2}, v{b+4*j+3}")
    e(f"v_max_f32 v{VM}, v{VM}, v{VM2}")
    e(f"v_mov_b32 v{VT}, v{VM}")
    e("s_nop 1")
    e(f"v_permlane32_swap_b32 v{VM}, v{VT}")
    e(f"v_max_f32 v{VM}, v{VM}, v{VT}")
    e(f"v_mul_f32 v{VM}, s{sC}, v{VM}")
    BL = 8
    nb = 128 // BL

    def fma(bk):
        for i in range(BL):
            r = S0 + bk*BL + i
            e(f"v_fma_f32 v{r}, v{r}, s{sC}, -v{VM}")

    def ex(bk):
        for i in range(BL):
            r = S0 + bk*BL + i
            e(f"v_exp_f32 v{r}, v{r}")

    def fin(bk):
        for i in range(BL):
            r = S0 + bk*BL + i
            if bk == 0 and i < 4:
                e(f"v_add_f32 v{VL+i}, v{r}, v{r+4}")
            elif bk == 0:
                pass
            else:
                e(f"v_add_f32 v{VL+(i&3)}, v{VL+(i&3)}, v{r}")
        for i in range(0, BL, 2):
            r = S0 + bk*BL + i
            e(f"v_cvt_pk_bf16_f32 v{S0+(bk*BL+i)//2}, v{r}, v{r+1}")
    fma(0)
    for bk in range(nb):
        ex(bk)
        if bk + 1 < nb:
            fma(bk + 1)
        else:
            e("s_nop 0")
        fin(bk)
    e(f"v_add_f32 v{VL}, v{VL}, v{VL+1}")
    e(f"v_add_f32 v{VL+2}, v{VL+2}, v{VL+3}")
    e(f"v_add_f32 v{VL}, v{VL}, v{VL+2}")
    e(f"v_mov_b32 v{VT}, v{VL}")
    e("s_nop 1")
    e(f"v_permlane32_swap_b32 v{VL}, v{VT}")
    e(f"v_add_f32 v{VL}, v{VL}, v{VT}")
    e(f"v_rcp_f32 v{VRL}, v{VL}")


def pv():
    NB, PF = 8, 6

    def rd(i):
        u, t = i >> 2, i & 3
        b = F0 + 4*(i % NB)
        e(f"ds_read_b64_tr_b16 {vr(b,2)}, v{VV+t} offset:{u*4096}")
        e(f"ds_read_b64_tr_b16 {vr(b+2,2)}, v{VV+t} offset:{u*4096+2048}")
    for i in range(PF):
        rd(i)
    for i in range(64):
        u, t = i >> 2, i & 3
        if i + PF < 64:
            rd(i + PF)
        e(f"s_waitcnt lgkmcnt({2*min(PF, 63-i)})")
        c = "0" if u == 0 else vr(O0+16*t, 16)
        e(f"v_mfma_f32_32x32x16_bf16 {vr(O0+16*t,16)}, {vr(F0+4*(i%NB),4)}, {vr(S0+4*u,4)}, {c}")


def ep():
    e("s_nop 11")
    e(f"s_add_u32 s{sT0}, s{sOoff}, 4096")
    for hh in range(2):
        for tt in range(2):
            t = 2*hh + tt
            for i in range(16):
                e(f"v_mul_f32 v{O0+16*t+i}, v{O0+16*t+i}, v{VRL}")
            for i in range(8):
                e(f"v_cvt_pk_bf16_f32 v{S0+8*t+i}, v{O0+16*t+2*i}, v{O0+16*t+2*i+1}")
            for jj in range(2):
                e(f"ds_write_b128 v{VSR+2*tt+jj}, {vr(S0+8*t+4*jj,4)}")
        for ii in range(4):
            e(f"ds_read_b128 {vr(F0+16*hh+4*ii,4)}, v{VSW} offset:{(ii&1)*128+(ii>>1)*2048}")
    for hh in range(2):
        for ii in range(4):
            rem = (3 - ii) + (8 if hh == 0 else 0)
            e(f"s_waitcnt lgkmcnt({rem})")
            so = sOoff if ii < 2 else sT0
            e(f"buffer_store_dwordx4 {vr(F0+16*hh+4*ii,4)}, v{VG}, {srd(sO)}, s{so} offen offset:{(ii&1)*256+hh*128} {o.st_flags}")


def stamp(j):
    if not o.stamps:
        return
    e("s_memtime s[44:45]")
    e(f"s_lshl_b32 s46, s{sIT}, 3")
    e(f"s_add_u32 m0, s46, {j}")
    e("s_waitcnt lgkmcnt(0)")
    e("v_writelane_b32 v252, s44, m0")
    if j == 0:
        e("s_memrealtime s[44:45]")
        e(f"s_add_u32 m0, s{sIT}, 16")
        e("s_waitcnt lgkmcnt(0)")
        e("v_writelane_b32 v253, s44, m0")


def gstamp(j):
    if not o.stamps:
        return
    e("s_memtime s[44:45]")
    e("s_memrealtime s[46:47]")
    e("s_waitcnt lgkmcnt(0)")
    e(f"v_writelane_b32 v253, s44, {2*j}")
    e(f"v_writelane_b32 v253, s46, {2*j+1}")


def prio(p):
    if o.prio:
        e(f"s_setprio {p}")


def gen():
    e("s_cmp_ge_u32 s2, 256")
    e("s_cbranch_scc1 L_end")
    if o.stamps:
        e("v_mov_b32 v252, 0")
        e("v_mov_b32 v253, 0")
        e("s_load_dwordx2 s[48:49], s[0:1], 40")
        e("s_getreg_b32 s50, hwreg(HW_REG_XCC_ID)")
        e("s_getreg_b32 s51, hwreg(HW_REG_HW_ID)")
        e("v_writelane_b32 v253, s50, 62")
        e("v_writelane_b32 v253, s51, 63")
    gstamp(0)
    if o.spin0:
        e("s_memtime s[44:45]")
        e("s_waitcnt lgkmcnt(0)")
        lab("L_spin0")
        e("s_sleep 4")
        e("s_memtime s[46:47]")
        e("s_waitcnt lgkmcnt(0)")
        e("s_sub_u32 s46, s46, s44")
        e(f"s_cmp_lt_u32 s46, {o.spin0}")
        e("s_cbranch_scc1 L_spin0")
    e("s_load_dwordx8 s[4:11], s[0:1], 0")
    e("v_lshrrev_b32 v1, 6, v0")
    e("v_and_b32 v0, 63, v0")
    e(f"v_readfirstlane_b32 s{sW}, v1")
    e(f"s_mov_b32 s{sC}, {hex(int.from_bytes(__import__('struct').pack('<f', 128**-0.5*math.log2(math.e)), 'little'))}")
    e(f"s_mov_b32 s{sIT}, 0")
    e("v_and_b32 v2, 31, v0")
    e("v_lshrrev_b32 v3, 5, v0")
    e("v_and_b32 v4, 15, v0")
    e("v_lshrrev_b32 v5, 4, v0")
    e("v_lshrrev_b32 v6, 3, v0")
    e("v_and_b32 v7, 7, v0")
    e(f"s_lshr_b32 s{sG}, s{sW}, 2")
    e(f"s_and_b32 s{sT1}, s{sW}, 3")
    e(f"s_lshl_b32 s{sT0}, s{sT1}, 2")
    e(f"v_add_u32 v8, s{sT0}, v5")
    e("v_xor_b32 v9, v4, v8")
    e(f"s_lshl_b32 s{sT2}, s{sG}, 4")
    e(f"v_add_u32 v8, s{sT2}, v8")
    e("v_lshlrev_b32 v8, 8, v8")
    e(f"v_lshl_add_u32 v{VKD}, v9, 4, v8")
    e("v_lshlrev_b32 v9, 2, v5")
    e("v_xor_b32 v9, v4, v9")
    e(f"v_lshl_add_u32 v{VVD}, v9, 4, v8")
    e(f"s_lshl_b32 s{sKL}, s{sW}, 10")
    e(f"s_add_u32 s{sVL}, s{sKL}, {VBASE}")
    e("v_lshlrev_b32 v8, 9, v6")
    e(f"v_lshl_add_u32 v{VG}, v7, 4, v8")
    if o.pairmap == 0:
        e(f"s_lshl_b32 s{sKoff}, s2, 16")
        e(f"s_mov_b32 s{sPSTEP}, {256*65536}")
    else:
        e(f"s_lshl_b32 s{sKoff}, s2, 18")
        e(f"s_mov_b32 s{sPSTEP}, 65536")
    e(f"s_mov_b32 s{sVoff}, s{sKoff}")
    e(f"s_lshl_b32 s{sQoff}, s{sKoff}, 1")
    e(f"s_lshl_b32 s{sT0}, s{sW}, 13")
    e(f"s_add_u32 s{sQoff}, s{sQoff}, s{sT0}")
    e(f"s_mov_b32 s{sOoff}, s{sQoff}")
    e("s_waitcnt lgkmcnt(0)")
    for r, p, sz in ((sQ, 4, 128 << 20), (sK, 6, 64 << 20), (sV, 8, 64 << 20), (sO, 10, 128 << 20)):
        e(f"s_mov_b32 s{r}, s{p}")
        e(f"s_and_b32 s{r+1}, s{p+1}, 0xffff")
        e(f"s_mov_b32 s{r+2}, {hex(sz)}")
        e(f"s_mov_b32 s{r+3}, 0x20000")
    dma(sK, VKD, sKL, sKoff)
    ldq()
    dma(sV, VVD, sVL, sVoff)
    e(f"s_add_u32 s{sKoff}, s{sKoff}, s{sPSTEP}")
    e(f"s_add_u32 s{sVoff}, s{sVoff}, s{sPSTEP}")
    e(f"s_add_u32 s{sQoff}, s{sQoff}, 65536")
    e("v_xor_b32 v8, v3, v4")
    e("v_lshlrev_b32 v8, 4, v8")
    e(f"v_lshl_add_u32 v{VK}, v2, 8, v8")
    for s in range(1, 8):
        e(f"v_xor_b32 v{VK+s}, {32*s}, v{VK}")
    e("v_bfe_u32 v8, v0, 2, 2")
    e("v_lshl_add_u32 v9, v3, 2, v8")
    e("v_lshlrev_b32 v9, 8, v9")
    e("v_lshl_add_u32 v9, v8, 6, v9")
    e("v_bfe_u32 v10, v0, 4, 1")
    e("v_lshl_add_u32 v9, v10, 5, v9")
    e("v_and_b32 v10, 1, v0")
    e("v_lshl_add_u32 v9, v10, 4, v9")
    e("v_bfe_u32 v10, v0, 1, 1")
    e("v_lshl_add_u32 v9, v10, 3, v9")
    e(f"v_add_u32 v{VV}, {VBASE}, v9")
    for t in range(1, 4):
        e(f"v_xor_b32 v{VV+t}, {64*t}, v{VV}")
    e(f"s_lshl_b32 s{sT0}, s{sW}, 12")
    e(f"s_add_u32 s{sT0}, s{sT0}, {STG}")
    e("v_xor_b32 v8, v7, v6")
    e("v_lshlrev_b32 v8, 4, v8")
    e("v_lshl_add_u32 v8, v6, 8, v8")
    e(f"v_add_u32 v{VSW}, s{sT0}, v8")
    e("v_bfe_u32 v8, v0, 1, 3")
    e("v_xor_b32 v8, v8, v3")
    e("v_lshlrev_b32 v8, 4, v8")
    e("v_lshl_add_u32 v8, v2, 7, v8")
    e(f"v_add_u32 v{VSR}, s{sT0}, v8")
    for s in range(1, 4):
        e(f"v_xor_b32 v{VSR+s}, {32*s}, v{VSR}")
    gstamp(1)
    e("s_waitcnt vmcnt(8)")
    gstamp(2)
    qprep()
    ldq()
    e(f"s_sub_u32 s{sQoff}, s{sQoff}, 65536")
    e(f"s_add_u32 s{sQoff}, s{sQoff}, s{sPSTEP}")
    e(f"s_add_u32 s{sQoff}, s{sQoff}, s{sPSTEP}")
    e("s_barrier")
    e("s_branch L_qk")

    lab("L_loop")
    e(f"s_and_b32 s{sT1}, s{sIT}, 1")
    e(f"s_or_b32 s{sT1}, s{sT1}, s{sG}")
    e("s_cbranch_scc1 L_qk")
    e("s_waitcnt vmcnt(16)")
    e("s_barrier")
    dma(sV, VVD, sVL, sVoff)
    e(f"s_add_u32 s{sVoff}, s{sVoff}, s{sPSTEP}")
    lab("L_qk")
    stamp(0)
    prio(1)
    if not o.nocompute:
        qk()
    prio(0)

    def sync_mid(tag, grp, steady):
        e(f"s_cmp_eq_u32 s{sG}, {grp}")
        e(f"s_cbranch_scc0 L_{tag}_done")
        e(f"s_bitcmp1_b32 s{sIT}, 0")
        e(f"s_cbranch_scc1 L_{tag}_odd")
        e(f"s_cmp_eq_u32 s{sIT}, 0")
        e(f"s_cbranch_scc1 L_{tag}_first")
        e(f"s_waitcnt vmcnt({steady})")
        e("s_barrier")
        e(f"s_branch L_{tag}_done")
        lab(f"L_{tag}_first")
        e("s_waitcnt vmcnt(8)")
        e("s_barrier")
        e(f"s_branch L_{tag}_done")
        lab(f"L_{tag}_odd")
        e("s_barrier")
        e(f"s_cmp_eq_u32 s{sIT}, 7")
        e(f"s_cbranch_scc1 L_{tag}_done")
        dma(sK, VKD, sKL, sKoff)
        e(f"s_add_u32 s{sKoff}, s{sKoff}, s{sPSTEP}")
        lab(f"L_{tag}_done")

    stamp(1)
    sync_mid("p1", 1, 16)
    stamp(2)
    if not o.nocompute:
        sm()
    stamp(3)
    sync_mid("p2", 0, 0)
    stamp(4)
    prio(1)
    if not o.nocompute:
        pv()
    prio(0)
    stamp(5)
    e(f"s_and_b32 s{sT1}, s{sIT}, s{sG}")
    e("s_cbranch_scc0 L_p3_done")
    e(f"s_cmp_eq_u32 s{sIT}, 7")
    e("s_cbranch_scc1 L_p3_done")
    e("s_waitcnt vmcnt(0)")
    e("s_barrier")
    dma(sV, VVD, sVL, sVoff)
    e(f"s_add_u32 s{sVoff}, s{sVoff}, s{sPSTEP}")
    lab("L_p3_done")
    stamp(6)
    ep()
    stamp(7)
    e(f"s_cmp_eq_u32 s{sIT}, 7")
    e("s_cbranch_scc1 L_fin")
    e(f"s_bitcmp1_b32 s{sIT}, 0")
    e("s_cbranch_scc1 L_e_odd")
    e(f"s_add_u32 s{sOoff}, s{sOoff}, 65536")
    e(f"s_mov_b32 s{sT2}, 65536")
    e("s_waitcnt vmcnt(8)")
    e("s_branch L_e_join")
    lab("L_e_odd")
    e(f"s_lshl_b32 s{sT2}, s{sPSTEP}, 1")
    e(f"s_sub_u32 s{sT2}, s{sT2}, 65536")
    e(f"s_add_u32 s{sOoff}, s{sOoff}, s{sT2}")
    e("s_waitcnt vmcnt(16)")
    lab("L_e_join")
    qprep()
    e(f"s_add_u32 s{sIT}, s{sIT}, 1")
    e(f"s_cmp_eq_u32 s{sIT}, 7")
    e("s_cbranch_scc1 L_qk")
    ldq()
    e(f"s_add_u32 s{sQoff}, s{sQoff}, s{sT2}")
    e("s_branch L_loop")
    lab("L_fin")
    if o.spin:
        e("s_waitcnt vmcnt(0)")
        e("s_memtime s[44:45]")
        e("s_waitcnt lgkmcnt(0)")
        lab("L_spin")
        e("s_sleep 4")
        e("s_memtime s[46:47]")
        e("s_waitcnt lgkmcnt(0)")
        e("s_sub_u32 s46, s46, s44")
        e(f"s_cmp_lt_u32 s46, {o.spin}")
        e("s_cbranch_scc1 L_spin")
    if o.stamps:
        gstamp(3)
        e("s_waitcnt vmcnt(0)")
        gstamp(4)
        e(f"s_lshl_b32 s50, s2, 3")
        e(f"s_add_u32 s50, s50, s{sW}")
        e("s_lshl_b32 s50, s50, 9")
        e("v_mbcnt_lo_u32_b32 v0, -1, 0")
        e("v_mbcnt_hi_u32_b32 v0, -1, v0")
        e("v_lshl_add_u32 v0, v0, 2, s50")
        e("global_store_dword v0, v252, s[48:49]")
        e("global_store_dword v0, v253, s[48:49] offset:256")
    lab("L_end")
    e("s_endpgm")


gen()
out = HDR + f""".amdgcn_target "amdgcn-amd-amdhsa--gfx950"
.text
.globl {NAME}_kernel
.p2align 8
.type {NAME}_kernel,@function
{NAME}_kernel:
""" + "\n".join(L) + f"""
.section .rodata,"a"
.p2align 6
.amdhsa_kernel {NAME}_kernel
  .amdhsa_next_free_vgpr {NVGPR}
  .amdhsa_next_free_sgpr 56
  .amdhsa_accum_offset {(NVGPR+3)//4*4}
  .amdhsa_group_segment_fixed_size 0
  .amdhsa_kernarg_size 48
  .amdhsa_user_sgpr_count 2
  .amdhsa_user_sgpr_kernarg_segment_ptr 1
  .amdhsa_system_sgpr_workgroup_id_x 1
.end_amdhsa_kernel
"""
open(sys.argv[1], "w").write(out)
```

```python
import sys, math, struct

NAME = "standalone__gqa_softmax__near_ridge"

HDR = """; Kernarg layout for this problem (48 bytes, ptrs only, base s[0:1]):
; @launch grid=(256,1,1) block=(512,1,1) lds=163840
"""


class Opt:
    ld_flags = "nt"
    q_flags = "nt"
    st_flags = "sc1"
    prio = 2
    stamps = 0
    wgrp = 2
    lead = 11
    thr = 10
    vlo = 0
    vhi = 122
    rd1 = 41
    rd2 = 65
    bq = 80
    oob = 0
    maxm = 0
    barpos = 7


o = Opt()
for a in sys.argv[2:]:
    k, v = a.split("=")
    cur = getattr(o, k)
    setattr(o, k, v.replace("+", " ") if isinstance(cur, str) else int(v))
L = []


def e(s):
    L.append("    " + s)


def lab(s):
    L.append(s + ":")


def vr(a, n):
    return f"v[{a}:{a+n-1}]"


def f32(x):
    return hex(struct.unpack("<I", struct.pack("<f", x))[0])


CLOG = f32(128 ** -0.5 * math.log2(math.e))
NCLOG = hex(int(CLOG, 16) | 0x80000000)

S0 = 0
O0 = 64
Q0 = 128
H0 = 160
U0 = 176
F0 = 208
VK, VV, VQ, VD, VG = 240, 241, 242, 243, 244
VM = 245
VNM = 247
VL = 249
VT = 251
VT2 = 254
NVGPR = 256

sQ, sK, sV, sO, sD = 12, 16, 20, 24, 28
sW, sG, sIT = 32, 33, 34
sWL = 35
sDL = 36
sQoff, sOoff = 37, 38
sT0, sT1, sT2 = 39, 40, 41
sZ = 42
sQa, sOb = 52, 56

KBASE, VBASE, STG = 0, 65536, 131072
PSTEP = 256 * 65536
BIG = (2 * PSTEP - 65536) & 0xffffffff


def srd(r):
    return f"s[{r}:{r+3}]"


def stamp(j):
    if o.stamps != 1:
        return
    e("s_memtime s[44:45]")
    e(f"s_lshl_b32 s46, s{sIT}, 3")
    e(f"s_add_u32 m0, s46, {j}")
    e("s_waitcnt lgkmcnt(0)")
    e("v_writelane_b32 v252, s44, m0")
    if j == 0:
        e("s_memrealtime s[44:45]")
        e(f"s_add_u32 m0, s{sIT}, 16")
        e("s_waitcnt lgkmcnt(0)")
        e("v_writelane_b32 v253, s44, m0")


def gstamp(j):
    if not o.stamps:
        return
    e("s_memtime s[44:45]")
    e("s_memrealtime s[46:47]")
    e("s_waitcnt lgkmcnt(0)")
    e(f"v_writelane_b32 v253, s44, {2*j}")
    e(f"v_writelane_b32 v253, s46, {2*j+1}")


SEG = {}
cur = [None]
nwait = [0]


def seg(name):
    cur[0] = name
    SEG[name] = []


def vm(kind, ins):
    SEG[cur[0]].append(("op", kind))
    e(ins)


def vwait(*kinds):
    nwait[0] += 1
    SEG[cur[0]].append(("wait", nwait[0], kinds))
    e(f"@W{nwait[0]}")


def resolve(orders):
    need = {}
    for order in orders:
        hist, done = [], 0
        ev = [x for sg in order for x in SEG[sg]]
        for x in ev:
            if x[0] == "op":
                hist.append(x[1])
            else:
                last = max((i for i, k in enumerate(hist) if k in x[2]), default=-1)
                need.setdefault(x[1], 63)
                if last >= done:
                    need[x[1]] = min(need[x[1]], len(hist) - 1 - last)
                    done = last + 1
    for i, l in enumerate(L):
        if l.strip().startswith("@W"):
            L[i] = f"    s_waitcnt vmcnt({need[int(l.strip()[2:])]})"


def prio_i(level):
    if o.prio == 2:
        return [f"s_setprio {level}"]
    if o.prio == 1 and level in (0, 2):
        return [f"s_setprio {level >> 1}"]
    return []


def prio(level):
    for x in prio_i(level):
        e(x)


def kv_dma(sr, lit, kind="KV"):
    return [(f"s_add_u32 m0, s{sWL}, {lit + n*4096}",
             f"buffer_load_dwordx4 v{VD}, {srd(sr)}, m0 offen {o.ld_flags} lds", kind) for n in range(8)]


def q_dma(zone=None):
    return [(f"s_mov_b32 m0, s{sZ if zone is None else zone}",
             f"buffer_load_dwordx4 v{VD}, {srd(sQ)}, s{sQa+i} offen offset:{i*1024} {o.q_flags} lds", "Q") for i in range(4)]


def q_offs(hh):
    for i in range(4):
        e(f"s_add_u32 s{sQa+i}, s{sQoff}, {hh*128+i*1024}")


def q_reads(dst, addr=VQ):
    return [f"ds_read_b128 {vr(dst+4*j,4)}, v{addr} offset:{(j>>1)*2048+(j&1)*512}" for j in range(4)]


def qreg(z, s):
    return Q0 + 16*(s >> 1) + 8*z + 4*(s & 1)


def sreg(kap, z):
    return S0 + 16*(kap >> 1) + 8*z + 4*(kap & 1)


def oreg(dl, z):
    return O0 + 32*(dl >> 2) + 16*z + 4*(dl & 3)


def o_stores(hh):
    return [(None, f"buffer_store_dwordx4 {vr(U0+16*hh+4*k,4)}, v{VG}, {srd(sO)}, s{sOoff if k < 2 else sOb} offen offset:{(k&1)*2048+hh*128} {o.st_flags}", "ST")
            for k in range(4)]


def ep_tile(t):
    b, u, rl = O0 + 16*t, U0 + 8*t, VL + (t & 1)
    r = [f"v_mul_f32 v{b+i}, v{b+i}, v{rl}" for i in range(16)]
    r += [f"v_cvt_pk_bf16_f32 v{u+4+i}, v{b+8+2*i}, v{b+9+2*i}" for i in range(4)]
    r += [f"v_cvt_pk_bf16_f32 v{b+i}, v{b+2*i}, v{b+2*i+1}" for i in range(4)]
    r += [f"v_cndmask_b32_dpp v{u+i}, v{u+4+i}, v{b+i}, vcc row_ror:8 row_mask:0xf bank_mask:0xf" for i in range(4)]
    r += [f"v_mov_b32_dpp v{u+4+i}, v{b+i} row_ror:8 row_mask:0xf bank_mask:0x3" for i in range(4)]
    return r


def ep_swap(hh):
    return [f"v_permlane16_swap_b32 v{U0+16*hh+4*k+i}, v{U0+16*hh+4*k+2+i}" for k in range(4) for i in range(2)]


def set_vcc_mask():
    e("s_mov_b32 vcc_lo, 0x00ff00ff")
    e("s_mov_b32 vcc_hi, 0x00ff00ff")


uid = [0]


def mphase(pv_half, qk_half, vms, qrd, qpos, bar_end, inmax, lo=None, hi=None, extra=None, barwait=()):
    frags, slots = [], []
    if pv_half is not None:
        for dl in range(8):
            f0 = len(frags)
            for u in range(4):
                off = pv_half*32768 + u*8192 + (dl >> 2)*1024 + (dl & 3)*256
                frags.append([lambda b, off=off: f"ds_read_b64_tr_b16 {vr(b,2)}, v{VV} offset:{off}",
                              lambda b, off=off: f"ds_read_b64_tr_b16 {vr(b+2,2)}, v{VV} offset:{off+4096}"])
            for z in range(2):
                for u in range(4):
                    d = vr(oreg(dl, z), 4)
                    c = "0" if (u == 0 and pv_half == 0) else d
                    slots.append((f0 + u, lambda b, d=d, c=c, p=S0+8*u+4*z: f"v_mfma_f32_16x16x32_bf16 {d}, {vr(b,4)}, {vr(p,4)}, {c}", []))
    if qk_half is not None:
        for kap in range(8):
            f0 = len(frags)
            for s in range(4):
                off = qk_half*32768 + kap*4096 + (s >> 1)*1024 + (s & 1)*512
                frags.append([lambda b, off=off: f"ds_read_b128 {vr(b,4)}, v{VK} offset:{off}"])
            for z in range(2):
                for s in range(4):
                    d = vr(sreg(kap, z), 4)
                    fill = []
                    if inmax and kap >= 2 and s >= 2:
                        b0 = sreg(kap - 2, z) + 2*(s - 2)
                        if kap == 2 and s == 2:
                            fill = [f"v_max_f32 v{VM+z}, v{b0}, v{b0+1}"]
                        else:
                            fill = [f"v_max3_f32 v{VM+z}, v{VM+z}, v{b0}, v{b0+1}"]
                    slots.append((f0 + s, lambda b, d=d, c=("0" if s == 0 else d), q=qreg(z, s): f"v_mfma_f32_16x16x32_bf16 {d}, {vr(b,4)}, {vr(q,4)}, {c}", fill))
    n, nf = len(slots), len(frags)
    fifo = []
    nxt = [0]

    def first_use(f):
        return 8*(f >> 2) + (f & 3)

    def rd_upto(i):
        while nxt[0] < nf and first_use(nxt[0]) - o.lead <= i:
            f = nxt[0]
            assert first_use(f) - 12 < i or f < 8
            for g_ in frags[f]:
                e(g_(F0 + 4*(f % 8)))
                fifo.append(f)
            nxt[0] += 1
    lo = o.vlo if lo is None else lo
    hi = min(o.vhi if hi is None else hi, n - 2)
    plan = {}
    for k, x in enumerate(vms):
        pos = lo + (k * (hi - lo + 1)) // len(vms)
        assert pos not in plan
        plan[pos] = x
    for k, v in (extra or {}).items():
        slots[k][2].extend(v)
    qr = list(qrd)
    prio(2)
    done = -1
    barred = not bar_end
    for i in range(n):
        if i == n // 2:
            prio(3)
        rd_upto(i)
        if qr and i >= qpos and (i % 8) in (1, 2, 3, 4):
            if len(qr) == len(qrd):
                vwait("Q")
            e(qr.pop(0))
            fifo.append(nxt[0] - 0.5)
        if not barred and nxt[0] == nf and i >= n - o.barpos:
            e("s_waitcnt lgkmcnt(0)")
            fifo.clear()
            done = nf
            if barwait:
                vwait(*barwait)
            e("s_barrier")
            barred = True
        f = slots[i][0]
        if done < f:
            need = min(f + o.wgrp - 1, f | 3)
            cnt = min(15, sum(1 for x in fifo if x > need))
            e(f"s_waitcnt lgkmcnt({cnt})")
            fifo[:] = fifo[len(fifo)-cnt:] if cnt else []
            done = need
        p = plan.pop(i, None)
        if p and p[0]:
            e(p[0])
        e(slots[i][1](F0 + 4*(f % 8)))
        if p:
            if p[2] == "Q":
                assert not qr and not any(x != int(x) for x in fifo), (i, qpos)
            vm(p[2], p[1])
        for x in slots[i][2]:
            e(x)
    assert not plan and barred and not qr
    prio(0)


def max_ops(inmax):
    r = []
    for kap in range(6 if inmax else 0, 8):
        for j in range(2):
            for z in range(2):
                b = sreg(kap, z) + 2*j
                if kap == 0 and j == 0:
                    r.append(f"v_max_f32 v{VM+z}, v{b}, v{b+1}")
                else:
                    r.append(f"v_max3_f32 v{VM+z}, v{VM+z}, v{b}, v{b+1}")
    return r


def xreduce(op, a, fin, dst):
    return (["s_nop 1", f"v_permlane32_swap_b32 v{a}, v{a+1}", f"{op} v{VT}, v{a}, v{a+1}", f"v_mov_b32 v{VT2}, v{VT}", "s_nop 1",
             f"v_permlane16_swap_b32 v{VT}, v{VT2}", f"{op} v{VT}, v{VT}, v{VT2}"] + fin +
            ["s_nop 1", f"v_permlane32_swap_b32 v{dst}, v{dst+1}"])


def sm_blocks(first):
    def regs(bk):
        return [(sreg(bk, i & 1) + (i >> 1), i & 1) for i in range(8)]

    def fma(bk):
        return [f"v_fmamk_f32 v{r}, v{r}, {CLOG}, v{VNM+z}" for r, z in regs(bk)]

    def ex(bk):
        return [f"v_exp_f32 v{r}, v{r}" for r, z in regs(bk)]

    def fin(bk):
        r_ = []
        for i, (r, z) in enumerate(regs(bk)):
            if first and bk == 0 and i < 2:
                r_.append(f"v_add_f32 v{VL+z}, v{r}, v{r+1}")
            elif first and bk == 0 and i < 4:
                pass
            else:
                r_.append(f"v_add_f32 v{VL+z}, v{VL+z}, v{r}")
        if bk & 1:
            for j in range(8):
                b = S0 + 16*(bk >> 1) + 2*j
                r_.append(f"v_cvt_pk_bf16_f32 v{S0+8*(bk>>1)+j}, v{b}, v{b+1}")
        return r_
    return [(fma(0) if bk == 0 else []) + ex(bk) + (fma(bk+1) if bk < 7 else ["s_nop 0"]) + fin(bk) for bk in range(8)]


def emit(lst):
    for x in lst:
        if x.endswith(":"):
            lab(x[:-1])
        else:
            e(x)


def v1(with_ep, inmax, swaps, stores=False):
    fin_max = max_ops(inmax) + xreduce("v_max_f32", VM, [f"v_mul_f32 v{VNM}, {NCLOG}, v{VT}", f"v_mul_f32 v{VNM+1}, {NCLOG}, v{VT}"], VNM)
    blk = sm_blocks(True)
    if not with_ep:
        emit(["s_nop 7"] + fin_max + sum(blk[:4], []) + prio_i(1) + sum(blk[4:], []))
        return
    set_vcc_mask()
    sw = [ep_swap(h) if h in swaps else [] for h in range(2)]
    if not stores:
        emit(ep_tile(0) + ep_tile(1) + ep_tile(2) + sw[0] + ep_tile(3) + fin_max + sw[1] + sum(blk[:3], []) + prio_i(1) + sum(blk[3:], []))
        return
    st = o_stores(0) + o_stores(1)
    emit(ep_tile(0) + ep_tile(1) + fin_max + sw[0])
    parts = [ep_tile(2), ep_tile(3), blk[0] + sw[1], blk[1], blk[2] + prio_i(1) + blk[3], blk[4], blk[5], blk[6] + blk[7]]
    for x, p in zip(st, parts):
        vm("ST", x[1])
        emit(p)


def v2(tag, inmax, swaps):
    blk = sm_blocks(False)
    main = [f"v_mov_b32 v{Q0+i}, v{H0+i}" for i in range(16)] + sum([ep_swap(h) for h in swaps], [])
    main += max_ops(inmax) + [f"v_fmamk_f32 v{VT}, v{VM}, {CLOG}, v{VNM}", f"v_fmamk_f32 v{VT2}, v{VM+1}, {CLOG}, v{VNM+1}",
                              f"v_max_f32 v{VT}, v{VT}, v{VT2}", f"v_cmp_lt_f32 vcc, {f32(o.thr)}, v{VT}",
                              f"s_cbranch_vccnz L_resc_{tag}", f"L_resc_ret_{tag}:"] + sum(blk[:4], []) + prio_i(1) + sum(blk[4:], [])
    main += xreduce("v_add_f32", VL, [f"v_rcp_f32 v{VL}, v{VT}", "s_nop 0", f"v_mov_b32 v{VL+1}, v{VL}"], VL)
    emit(main)


def rescale(g):
    lab(f"L_resc_{g}")
    emit(xreduce("v_max_f32", VM, [f"v_mul_f32 v{VM}, {NCLOG}, v{VT}", f"v_mul_f32 v{VM+1}, {NCLOG}, v{VT}"], VM))
    for z, t in ((0, VT), (1, VT2)):
        e(f"v_min_f32 v{VM+z}, v{VM+z}, v{VNM+z}")
        e(f"v_sub_f32 v{t}, v{VM+z}, v{VNM+z}")
        e(f"v_exp_f32 v{t}, v{t}")
        e(f"v_mov_b32 v{VNM+z}, v{VM+z}")
    for i in range(64):
        e(f"v_mul_f32 v{O0+i}, v{O0+i}, v{VT2 if (i >> 4) & 1 else VT}")
    e(f"v_mul_f32 v{VL}, v{VL}, v{VT}")
    e(f"v_mul_f32 v{VL+1}, v{VL+1}, v{VT2}")
    e(f"s_branch L_resc_ret_{g}")


def adv(r):
    e(f"s_add_u32 s{r}, s{r}, {PSTEP}")
    e(f"s_addc_u32 s{r+1}, s{r+1}, 0")


def issue(ops):
    for p, l, k in ops:
        e(p)
        e("s_nop 0")
        vm(k, l)


def o_adv(step):
    e(f"s_add_u32 s{sOoff}, s{sOoff}, {step}")
    e(f"s_add_u32 s{sOb}, s{sOoff}, 4096")
    if not o.oob:
        e(f"s_mov_b32 s{sO+2}, {hex(128 << 20)}")


def first(g):
    A = g == "A"
    seg(g + "first")
    lab(f"L_first_{g}")
    if not A:
        issue(kv_dma(sK, KBASE, "K0"))
    e(f"s_sub_u32 s{sT2}, s{sZ}, 32768")
    q_offs(0)
    issue(q_dma(sT2))
    q_offs(1)
    issue(q_dma())
    e(f"v_add_u32 v{VT}, {hex((-32768) & 0xffffffff)}, v{VQ}")
    if A:
        issue(kv_dma(sV, VBASE))
    else:
        vwait("K0")
        e("s_barrier")
        issue(kv_dma(sK, KBASE + 32768))
    gstamp(1)
    vwait("Q")
    gstamp(2)
    emit(q_reads(Q0, VT) + q_reads(Q0 + 16))
    e(f"s_add_u32 s{sQoff}, s{sQoff}, 65536")
    q_offs(0)
    e("s_waitcnt lgkmcnt(0)")
    if A:
        e("s_barrier")
        adv(sK)
    stamp(0)
    stamp(1)
    mphase(None, 0, q_dma(), [], 0, not A, o.maxm & 1, lo=(24 if A else 0), hi=(60 if A else 40), barwait=() if A else ("KV",))
    stamp(2)
    v1(False, o.maxm & 1, ())
    if o.oob:
        for r in (sQ, sK, sV):
            e(f"s_mov_b32 s{r+2}, 0")


def group_a():
    ma, mb = o.maxm & 1, o.maxm & 2
    first("A")

    def head(j, hh):
        stamp(j)
        q_offs(hh)
        vwait("KV")
        e("s_barrier")
        stamp(j + 1)

    lab("L_loop_A")
    seg("A1")
    head(3, 1)
    mphase(0, 1, kv_dma(sV, VBASE + 32768) + q_dma(), q_reads(H0), o.rd2, False, mb)
    stamp(5)
    adv(sV)
    e(f"s_add_u32 s{sQoff}, s{sQoff}, {BIG}")
    e(f"s_cmp_eq_u32 s{sIT}, 6")
    e(f"s_cselect_b32 s{sQ+2}, 0, s{sQ+2}")
    e(f"s_cselect_b32 s{sK+2}, 0, s{sK+2}")
    stamp(6)
    v2("A0", mb, (0, 1))
    stamp(7)
    e(f"s_add_u32 s{sIT}, s{sIT}, 1")
    head(0, 0)
    mphase(1, 0, o_stores(0) + o_stores(1) + q_dma(), q_reads(Q0 + 16), o.rd1, False, ma)
    o_adv(BIG)
    stamp(2)
    v1(True, ma, (0, 1), stores=True)
    head(3, 1)
    mphase(0, 1, kv_dma(sK, KBASE) + q_dma(), q_reads(H0), o.rd2, False, mb)
    stamp(5)
    e(f"s_add_u32 s{sQoff}, s{sQoff}, 65536")
    o_adv(65536)
    stamp(6)
    v2("A1", mb, ())
    stamp(7)
    e(f"s_add_u32 s{sIT}, s{sIT}, 1")
    e(f"s_cmp_eq_u32 s{sIT}, 8")
    e("s_cbranch_scc1 L_exit_A")
    seg("A2")
    head(0, 0)
    mphase(1, 0, kv_dma(sV, VBASE) + kv_dma(sK, KBASE + 32768) + q_dma(), q_reads(Q0 + 16), o.rd1, False, ma)
    adv(sK)
    stamp(2)
    v1(True, ma, ())
    e("s_branch L_loop_A")
    lab("L_exit_A")
    e("s_barrier")
    e("s_branch L_last")
    rescale("A0")
    rescale("A1")


def group_b():
    ma, mb = o.maxm & 1, o.maxm & 2
    first("B")
    lab("L_loop_B")
    seg("B1")
    stamp(3)
    q_offs(1)
    stamp(4)
    sw = ep_swap(1)
    mphase(0, 1, o_stores(0) + o_stores(1) + q_dma(), q_reads(H0), o.rd2, True, mb, extra={4 + 4*k: [sw[k]] for k in range(8)})
    stamp(5)
    e(f"s_bitcmp0_b32 s{sIT}, 0")
    e(f"s_cselect_b32 s{sT1}, {BIG}, s{sT0}")
    e(f"s_add_u32 s{sQoff}, s{sQoff}, s{sT1}")
    o_adv(f"s{sT1}")
    e(f"s_cmp_eq_u32 s{sIT}, 6")
    e(f"s_cselect_b32 s{sQ+2}, 0, s{sQ+2}")
    stamp(6)
    v2("B", mb, ())
    stamp(7)
    e(f"s_add_u32 s{sIT}, s{sIT}, 1")
    e(f"s_cmp_eq_u32 s{sIT}, 8")
    e("s_cbranch_scc1 L_last")
    seg("B2")
    stamp(0)
    q_offs(0)
    stamp(1)
    mphase(1, 0, q_dma(), q_reads(Q0 + 16), o.rd1, True, ma, lo=o.bq, hi=116)
    stamp(2)
    v1(True, ma, (0,))
    e("s_branch L_loop_B")
    rescale("B")


def gen():
    e("s_cmp_ge_u32 s2, 256")
    e("s_cbranch_scc1 L_end")
    if o.stamps:
        e("v_mov_b32 v252, 0")
        e("v_mov_b32 v253, 0")
        e("s_load_dwordx2 s[48:49], s[0:1], 40")
        e("s_getreg_b32 s50, hwreg(HW_REG_XCC_ID)")
        e("s_getreg_b32 s51, hwreg(HW_REG_HW_ID)")
        e("v_writelane_b32 v253, s50, 62")
        e("v_writelane_b32 v253, s51, 63")
    gstamp(0)
    e("s_load_dwordx8 s[4:11], s[0:1], 0")
    e("v_lshrrev_b32 v1, 6, v0")
    e("v_and_b32 v0, 63, v0")
    e(f"v_readfirstlane_b32 s{sW}, v1")
    e(f"s_mov_b32 s{sIT}, 0")
    e("v_lshrrev_b32 v3, 5, v0")
    e("v_bfe_u32 v4, v0, 4, 1")
    e("v_bfe_u32 v5, v0, 3, 1")
    e("v_lshrrev_b32 v6, 3, v0")
    e("v_and_b32 v7, 7, v0")
    e(f"s_lshr_b32 s{sG}, s{sW}, 2")
    e(f"s_and_b32 s{sT1}, s{sW}, 1")
    e(f"s_bfe_u32 s{sT2}, s{sW}, 0x10001")
    e(f"s_lshl_b32 s{sWL}, s{sT1}, 11")
    e(f"s_lshl_b32 s{sT0}, s{sT2}, 10")
    e(f"s_add_u32 s{sWL}, s{sWL}, s{sT0}")
    e(f"s_mul_i32 s{sT1}, s{sT2}, 896")
    e("v_lshlrev_b32 v8, 8, v7")
    e(f"v_lshl_add_u32 v{VD}, v6, 4, v8")
    e("v_lshl_add_u32 v9, v5, 6, v8")
    e("v_lshl_add_u32 v9, v4, 5, v9")
    e(f"v_lshl_add_u32 v{VG}, v3, 4, v9")
    e("v_lshrrev_b32 v8, 4, v0")
    e("v_lshlrev_b32 v8, 7, v8")
    e("v_lshl_add_u32 v8, v7, 4, v8")
    e(f"v_lshl_add_u32 v{VK}, v5, 11, v8")
    e(f"s_lshl_b32 s{sZ}, s{sW}, 12")
    e(f"s_add_u32 s{sZ}, s{sZ}, {STG}")
    e("v_lshl_add_u32 v8, v5, 10, v8")
    e(f"v_add_u32 v{VQ}, s{sZ}, v8")
    e("v_lshlrev_b32 v9, 11, v3")
    e("v_bfe_u32 v10, v0, 1, 1")
    e("v_lshl_add_u32 v9, v10, 7, v9")
    e("v_bfe_u32 v10, v0, 2, 3")
    e("v_lshl_add_u32 v9, v10, 4, v9")
    e("v_and_b32 v10, 1, v0")
    e("v_lshl_add_u32 v9, v10, 3, v9")
    e(f"v_add_u32 v{VV}, {VBASE}, v9")
    e(f"s_lshl_b32 s{sT2}, s2, 16")
    e(f"s_lshl_b32 s{sQoff}, s2, 17")
    e(f"s_lshl_b32 s{sT0}, s{sW}, 13")
    e(f"s_add_u32 s{sQoff}, s{sQoff}, s{sT0}")
    e(f"s_sub_u32 s{sOoff}, s{sQoff}, {BIG}")
    e(f"s_mov_b32 s{sOb}, s{sOoff}")
    e(f"s_mov_b32 s{sT0}, 65536")
    e("s_waitcnt lgkmcnt(0)")
    for r, p in ((sQ, 4), (sO, 10)):
        e(f"s_mov_b32 s{r}, s{p}")
        e(f"s_and_b32 s{r+1}, s{p+1}, 0xffff")
        e(f"s_mov_b32 s{r+2}, {hex(128 << 20) if r == sQ else 0}")
        e(f"s_mov_b32 s{r+3}, 0x20000")
    for r, p, sub in ((sK, 6, KBASE), (sV, 8, VBASE)):
        e(f"s_add_u32 s{r+2}, s{sT1}, {sub}")
        e(f"s_add_u32 s{r}, s{p}, s{sT2}")
        e(f"s_addc_u32 s{r+1}, s{p+1}, 0")
        e(f"s_sub_u32 s{r}, s{r}, s{r+2}")
        e(f"s_subb_u32 s{r+1}, s{r+1}, 0")
        e(f"s_add_u32 s{r+2}, s{r+2}, 65536")
        e(f"s_mov_b32 s{r+3}, 0x20000")
    e(f"s_cmp_eq_u32 s{sG}, 0")
    e("s_cbranch_scc0 L_first_B")
    group_a()
    group_b()
    lab("L_last")
    seg("last")
    mphase(1, None, [], [], 0, False, False)
    set_vcc_mask()
    e("s_nop 7")
    emit(ep_tile(0) + ep_tile(1) + ["s_nop 1"] + ep_swap(0))
    emit([x[1] for x in o_stores(0)])
    emit(ep_tile(2) + ep_tile(3) + ["s_nop 1"] + ep_swap(1))
    emit([x[1] for x in o_stores(1)])
    if o.stamps:
        gstamp(3)
        e("s_waitcnt vmcnt(0)")
        gstamp(4)
        e(f"s_lshl_b32 s50, s2, 3")
        e(f"s_add_u32 s50, s50, s{sW}")
        e("s_lshl_b32 s50, s50, 9")
        e("v_mbcnt_lo_u32_b32 v0, -1, 0")
        e("v_mbcnt_hi_u32_b32 v0, -1, v0")
        e("v_lshl_add_u32 v0, v0, 2, s50")
        e("global_store_dword v0, v252, s[48:49]")
        e("global_store_dword v0, v253, s[48:49] offset:256")
    lab("L_end")
    e("s_endpgm")


gen()
resolve([["Afirst"] + ["A1", "A2"]*3 + ["A1", "last"], ["Bfirst"] + ["B1", "B2"]*7 + ["B1", "last"]])
out = HDR + f""".amdgcn_target "amdgcn-amd-amdhsa--gfx950"
.text
.globl {NAME}_kernel
.p2align 8
.type {NAME}_kernel,@function
{NAME}_kernel:
""" + "\n".join(L) + f"""
.section .rodata,"a"
.p2align 6
.amdhsa_kernel {NAME}_kernel
  .amdhsa_next_free_vgpr {NVGPR}
  .amdhsa_next_free_sgpr 60
  .amdhsa_accum_offset {(NVGPR+3)//4*4}
  .amdhsa_group_segment_fixed_size 0
  .amdhsa_kernarg_size 48
  .amdhsa_user_sgpr_count 2
  .amdhsa_user_sgpr_kernarg_segment_ptr 1
  .amdhsa_system_sgpr_workgroup_id_x 1
.end_amdhsa_kernel
"""
open(sys.argv[1], "w").write(out)
```
